```python
import torch

def _softmax(x, axis=-1):
    return torch.softmax(x, dim=axis)

def _gelu(x):
    return torch.nn.functional.gelu(x, approximate='tanh')

def _silu(x):
    return torch.nn.functional.silu(x)

def _sigmoid(x):
    return torch.sigmoid(x)

def _layernorm(x, axis=-1, eps=1e-05):
    m = x.mean(dim=axis, keepdim=True)
    v = x.var(dim=axis, keepdim=True, unbiased=False)
    return (x - m) / torch.sqrt(v + eps)

def _scatter_add(tgt, idx, src, axis=0):
    return tgt.clone().index_add_(axis, idx, src)

def _segment_sum(src, seg, n):
    out = torch.zeros((n,) + src.shape[1:], dtype=src.dtype)
    return out.index_add_(0, seg, src)

def _pad(x, pw):
    flat = tuple((v for pair in reversed(pw) for v in pair))
    return torch.nn.functional.pad(x, flat)
kernel_name = 'adaLN_cond__mha_block__glu_gated_swiglu__prompt'

def setup_inputs():

    _w = lambda a: (lambda t: t.to(torch.bfloat16) if t.is_floating_point() else t)(torch.as_tensor(a))

    def _A_setup():
        B, S, D, H = (1, 2048, 512, 32)
        return {'x': _w((lambda *s: torch.randn(*s, dtype=torch.bfloat16) * 0.05)(B, S, D)), 'wqkv': _w((lambda *s: torch.randn(*s, dtype=torch.bfloat16) * 0.05)(D, 3 * D)), 'wo': _w((lambda *s: torch.randn(*s, dtype=torch.bfloat16) * 0.05)(D, D))}
    _A_in = _A_setup()

    def _B_setup():
        B, S, D, F = (1, 2048, 512, 1376)
        return {'x': _w((lambda *s: torch.randn(*s, dtype=torch.bfloat16) * 0.05)(B, S, D)), 'w1': _w((lambda *s: torch.randn(*s, dtype=torch.bfloat16) * 0.8)(D, F) * (2.0 / D) ** 0.5), 'w3': _w((lambda *s: torch.randn(*s, dtype=torch.bfloat16) * 0.8)(D, F) * (2.0 / D) ** 0.5), 'w2': _w((lambda *s: torch.randn(*s, dtype=torch.bfloat16) * 0.8)(F, D) * (2.0 / F) ** 0.5)}
    _B_in = _B_setup()
    return {'A_x': _A_in['x'], 'A_wqkv': _A_in['wqkv'], 'A_wo': _A_in['wo'], 'B_x': _B_in['x'], 'B_w1': _B_in['w1'], 'B_w3': _B_in['w3'], 'B_w2': _B_in['w2'], 'c': _w((lambda *s: torch.randn(*s, dtype=torch.bfloat16) * 0.2)(1, 512) * 8.0), 'w_mod': _w((lambda *s: torch.randn(*s, dtype=torch.bfloat16) * 0.2)(512, 6 * 512) * 512 ** (-0.5) * 8.0)}

def reference(A_x, A_wqkv, A_wo, B_x, B_w1, B_w3, B_w2, c, w_mod):

    def _A_ref(x, wqkv, wo):
        B, S, D = x.shape
        H = 32
        Dh = D // H
        qkv = (lambda x, *d: x.permute(*d))((x @ wqkv).reshape(B, S, 3, H, Dh), 2, 0, 3, 1, 4)
        q, k, v = (qkv[0], qkv[1], qkv[2])
        scores = torch.einsum('bhqd,bhkd->bhqk', q, k) * Dh ** (-0.5)
        p = _softmax(scores, axis=-1)
        o = torch.einsum('bhqk,bhkd->bhqd', p, v)
        return (lambda x, *d: x.permute(*d))(o, 0, 2, 1, 3).reshape(B, S, D) @ wo

    def _B_ref(x, w1, w3, w2):
        gate = torch.einsum('bsd,df->bsf', x, w1)
        up = torch.einsum('bsd,df->bsf', x, w3)
        h = _silu(gate) * up
        out = torch.einsum('bsf,fd->bsd', h, w2)
        return out
    x = A_x
    mod = (_silu(c) @ w_mod).reshape(c.shape[0], 6, 1, -1)
    sa, ca, ga, sb, cb, gb = (mod[:, 0].clone(), mod[:, 1].clone(), mod[:, 2].clone(), mod[:, 3].clone(), mod[:, 4].clone(), mod[:, 5].clone())
    h = _layernorm(x, axis=-1) * (1 + ca) + sa
    x = x + ga * _A_ref(h, A_wqkv, A_wo)
    h = _layernorm(x, axis=-1) * (1 + cb) + sb
    x = x + gb * _B_ref(h, B_w1, B_w3, B_w2)
    return x
```

```python
import re

TRANS = ("v_exp_f32","v_log_f32","v_rcp_f32","v_rsq_f32","v_sqrt_f32","v_sin_f32","v_cos_f32","v_exp_f16","v_rcp_f16","v_rcp_iflag_f32","v_log_f16","v_rsq_f16","v_sqrt_f16")

def regs_of(tok):
    tok = tok.strip()
    neg = tok.lstrip('-')
    if neg.startswith('abs(') or neg.startswith('|'):
        neg = neg.replace('abs(', '').replace(')', '').replace('|', '')
    tok = neg
    m = re.fullmatch(r'([vas])(\d+)', tok)
    if m: return [(m.group(1), int(m.group(2)))]
    m = re.fullmatch(r'([vas])\[(\d+):(\d+)\]', tok)
    if m: return [(m.group(1), i) for i in range(int(m.group(2)), int(m.group(3))+1)]
    if tok == 'vcc': return [('s', 'vcc_lo'), ('s', 'vcc_hi')]
    if tok in ('vcc_lo', 'vcc_hi'): return [('s', tok)]
    if tok == 'exec': return [('s', 'exec_lo'), ('s', 'exec_hi')]
    if tok in ('exec_lo', 'exec_hi'): return [('s', tok)]
    if tok == 'm0': return [('s', 'm0')]
    return []

class Ins:
    def __init__(self, text):
        self.text = text
        t = text.split(';')[0].strip()
        self.is_label = t.endswith(':')
        self.is_dir = t.startswith('.')
        self.mn = ''
        self.dst = []; self.src = []
        if not t or self.is_label or self.is_dir:
            return
        parts = t.split(None, 1)
        self.mn = mn = parts[0]
        rest = parts[1] if len(parts) > 1 else ''
        ops = [o.strip() for o in re.split(r',(?![^\[]*\])', rest)] if rest else []
        mods = ''
        if ops:
            sp = ops[-1].split(None, 1)
            if len(sp) > 1 and not ops[-1].startswith('abs') :
                ops[-1] = sp[0]; mods = sp[1]
        self.ops = ops; self.mods = mods
        R = [regs_of(o) for o in ops]
        self.kind = 'other'
        self.base = mn
        base = re.sub(r'_(e32|e64|dpp|sdwa)$', '', mn)
        self.base = base
        if mn.startswith('v_mfma'):
            self.kind = 'mfma'
            self.dst = R[0]; self.A = R[1]; self.B = R[2]; self.C = R[3]
            self.src = R[1] + R[2] + R[3]
            self.passes = 8 if '32x32' in mn else 4
        elif mn.startswith('v_'):
            self.kind = 'valu'
            self.trans = base in TRANS
            self.dpp = mn.endswith('_dpp') or 'row_' in mods or 'quad_perm' in mods
            if base.startswith('v_cmp'):
                self.dst = R[0]; self.src = sum(R[1:], [])
                if base.startswith('v_cmpx'): self.dst = self.dst + regs_of('exec')
            elif base in ('v_readfirstlane_b32', 'v_readlane_b32'):
                self.dst = R[0]; self.src = sum(R[1:], [])
            elif base.startswith('v_permlane') and 'swap' in base:
                self.dst = R[0] + R[1]; self.src = R[0] + R[1]
            elif base in ('v_add_co_u32','v_sub_co_u32','v_subrev_co_u32'):
                self.dst = R[0] + R[1]; self.src = sum(R[2:], [])
            elif base in ('v_addc_co_u32','v_subb_co_u32'):
                self.dst = R[0] + R[1]; self.src = sum(R[2:], [])
            elif base in ('v_fmac_f32','v_dot2c_f32_bf16','v_mac_f32','v_pk_fmac_f16','v_writelane_b32'):
                self.dst = R[0]; self.src = sum(R, [])
            elif base == 'v_nop':
                pass
            else:
                self.dst = R[0]; self.src = sum(R[1:], [])
                if 'UNUSED_PRESERVE' in mods: self.src += R[0]
                if base == 'v_cndmask_b32' and len(ops) == 3: self.src += regs_of('vcc')
                if self.dpp: self.src += R[0]
        elif mn.startswith('ds_'):
            self.kind = 'ds'
            if mn.startswith('ds_read') or mn.startswith('ds_bpermute') or mn.startswith('ds_swizzle') or mn.startswith('ds_permute'):
                self.dst = R[0]; self.src = sum(R[1:], [])
            else:
                self.src = sum(R, [])
        elif mn.startswith('global_') or mn.startswith('buffer_'):
            self.kind = 'vmem'
            self.lds_dma = ('_lds_' in mn) or (' lds' in (' ' + mods))
            self.is_store = 'store' in mn
            self.is_atomic = 'atomic' in mn
            self.is_cache = mn.startswith('buffer_inv') or mn.startswith('buffer_wbl2')
            if self.is_cache:
                pass
            elif self.lds_dma:
                self.src = sum(R, []) + regs_of('m0')
            elif self.is_store:
                self.src = sum(R, [])
            elif self.is_atomic:
                self.src = sum(R, [])
                if 'sc0' in mods: self.dst = R[0]
            else:
                self.dst = R[0]; self.src = sum(R[1:], [])
            if self.is_store:
                data = R[1] if mn.startswith('global_') else R[0]
                self.store_data = data
        elif mn.startswith('s_'):
            self.kind = 'salu'
            if mn.startswith('s_load') or mn.startswith('s_buffer_load'):
                self.kind = 'smem'; self.dst = R[0]; self.src = sum(R[1:], [])
            elif mn in ('s_memtime', 's_memrealtime'):
                self.kind = 'smem'; self.dst = R[0]
            elif mn.startswith('s_cmp') or mn.startswith('s_cbranch') or mn in ('s_branch','s_barrier','s_waitcnt','s_nop','s_endpgm','s_setprio','s_sleep') or mn.startswith('s_bitcmp'):
                self.src = sum(R, [])
            elif 'saveexec' in mn:
                self.dst = R[0] + regs_of('exec'); self.src = sum(R[1:], []) + regs_of('exec')
            else:
                self.dst = R[0]; self.src = sum(R[1:], [])
    def wait_states(self):
        if self.mn == 's_nop': return int(self.ops[0], 0) + 1
        if self.mn == '' : return 0
        return 1

class Asm:
    def __init__(self, name='k', autonop=True):
        self.lines = []
        self.name = name
        self.autonop = autonop
        self.nlabel = 0
    def __call__(self, s):
        for l in s.split('\n'):
            l = l.strip()
            if l: self.lines.append(l)
    def label(self, l): self.lines.append(l + ':')
    def newlabel(self, p='L'):
        self.nlabel += 1
        return f"{p}_{self.name}_{self.nlabel}"
    def comment(self, c): self.lines.append('; ' + c)

def required_gap(prev, cur):
    need = 0
    pd = set(prev.dst); cs = set(cur.src); cd = set(cur.dst)
    pv = {r for r in pd if r[0] in 'va'}
    ps = {r for r in pd if r[0] == 's'}
    if prev.kind == 'valu':
        if prev.base.startswith('v_dot'):
            if cur.base == prev.base:
                ab = set(sum([regs_of(o) for o in cur.ops[1:3]], []))
                if pv & ab: need = max(need, 3)
            elif pv & (cs | cd): need = max(need, 3)
        if cur.kind == 'mfma' and (pv & cs): need = max(need, 2)
        if cur.kind == 'valu':
            if prev.trans and not cur.trans and (pv & cs): need = max(need, 1)
            if cur.base.startswith('v_permlane') and (pv & cs): need = max(need, 2)
            if cur.dpp and (pv & cs): need = max(need, 2)
            if cur.base in ('v_readfirstlane_b32','v_readlane_b32') and (pv & cs): need = max(need, 1)
            if ps & cs:
                need = max(need, 4 if cur.base in ('v_readlane_b32','v_writelane_b32') else 2)
            if ('s','exec_lo') in ps and cur.dpp: need = max(need, 5)
            if 'sdwa' in prev.mn and (pv & (cs|cd)): need = max(need, 1)
        if cur.kind == 'vmem' and (ps & cs): need = max(need, 5)
        if cur.kind == 'mfma' and ('s','exec_lo') in ps: need = max(need, 4)
        if cur.kind in ('salu','smem') and (ps & cs): need = max(need, 4)
    if prev.kind == 'mfma':
        D = set(prev.dst); n8 = prev.passes == 8
        if cur.kind == 'mfma':
            C = set(cur.C)
            if D & (set(cur.A) | set(cur.B)): need = max(need, 12 if n8 else 8)
            if D & C:
                if list(prev.dst) == list(cur.C) and prev.passes == cur.passes: pass
                else: need = max(need, 10 if n8 else 6)
            if (D & set(cur.dst)) and not (list(prev.dst) == list(cur.C)): need = max(need, 10 if n8 else 6)
        elif cur.kind == 'valu':
            if D & (cs | cd): need = max(need, 12 if n8 else 8)
            if set(prev.C) & cd: need = max(need, 7 if n8 else 3)
        elif cur.kind in ('vmem', 'ds'):
            if D & (cs | cd): need = max(need, 12 if n8 else 8)
            if set(prev.C) & cd: need = max(need, 7 if n8 else 3)
    if prev.kind == 'vmem' and getattr(prev, 'is_store', False):
        if len(prev.store_data) >= 3 and (set(prev.store_data) & cd):
            need = max(need, 2 if cur.kind in ('valu','mfma') else 1)
    if prev.kind == 'salu' and ('s','m0') in ps:
        if cur.kind == 'vmem' and cur.lds_dma: need = max(need, 1)
    return need

def lint(lines, name='', autonop=True, verbose=True, maxlook=20):
    ins = [Ins(l) for l in lines]
    out = []
    inserted = 0
    labels = {}
    for i in ins:
        if i.is_label:
            labels[i.text.strip()[:-1]] = len(out)
            out.append(i); continue
        if i.mn == '':
            out.append(i); continue
        dist = 0; short = 0
        j = len(out) - 1
        n = 0
        while j >= 0 and dist < maxlook:
            p = out[j]
            if p.mn != '':
                need = required_gap(p, i)
                if need > dist: short = max(short, need - dist)
                dist += p.wait_states()
            j -= 1
        if short > 0:
            if not autonop: raise RuntimeError(f"hazard before: {i.text} short {short}")
            k = short
            while k > 0:
                m = min(k, 16)
                out.append(Ins(f"s_nop {m-1}")); k -= m
            inserted += 1
            if verbose: print(f"[lint {name}] +{short} ws before: {i.text}")
        out.append(i)
        if i.mn.startswith('s_cbranch') or i.mn == 's_branch':
            tgt = i.ops[0]
            if tgt in labels:
                head = [x for x in out[labels[tgt]:] if x.mn != ''][:maxlook]
                tail = [x for x in out if x.mn != '']
                d0 = 0
                for hi, h in enumerate(head):
                    dist = d0
                    for p in reversed(tail[-maxlook:]):
                        need = required_gap(p, h)
                        if need > dist:
                            raise RuntimeError(f"[lint {name}] loop-carried hazard: {p.text} -> {h.text} need {need} have {dist}")
                        dist += p.wait_states()
                    d0 += h.wait_states()
    return out, inserted

def waitcheck(ins, name=''):
    labels = {}
    for k, i in enumerate(ins):
        if i.is_label: labels[i.text.strip()[:-1]] = k
    vm = []
    lg = []
    errs = []
    visited_back = {}
    k = 0
    steps = 0
    while k < len(ins):
        i = ins[k]; steps += 1
        if steps > 2000000: break
        if i.mn == '': k += 1; continue
        if i.mn == 's_waitcnt':
            m = re.search(r'vmcnt\((\d+)\)', i.text)
            if m:
                n = int(m.group(1))
                while len(vm) > n: vm.pop(0)
            m = re.search(r'lgkmcnt\((\d+)\)', i.text)
            if m:
                n = int(m.group(1))
                if n > 0 and any(x[1] for x in lg): errs.append(f"lgkmcnt({n}) with SMEM outstanding at: {i.text}")
                while len(lg) > n: lg.pop(0)
            k += 1; continue
        touched = set(i.src) | set(i.dst)
        for d, t in [(x[0], x[1]) for x in vm] + [(x[0], x[2]) for x in lg]:
            if d & touched:
                errs.append(f"use of in-flight reg {sorted(d & touched, key=str)[:3]} by '{i.text}' (pending '{t}')")
        if i.kind == 'vmem':
            vm.append((set(i.dst), i.text))
            if len(vm) > 63: errs.append(f"vmcnt overflow (>63) at {i.text}")
        elif i.kind == 'ds':
            lg.append((set(i.dst), False, i.text))
            if len(lg) > 15 and False: errs.append(f"lgkmcnt >15 at {i.text}")
        elif i.kind == 'smem':
            if i.mn not in ('s_memtime', 's_memrealtime'): lg.append((set(i.dst), True, i.text))
        if (i.mn.startswith('s_cbranch') or i.mn == 's_branch'):
            tgt = i.ops[0]
            if tgt in labels and labels[tgt] <= k and visited_back.get(k, 0) < 1:
                visited_back[k] = visited_back.get(k, 0) + 1
                k = labels[tgt]; continue
            if i.mn == 's_branch' and tgt in labels and labels[tgt] > k:
                vm = []; lg = []
        k += 1
    uniq = []
    for e in errs:
        if e not in uniq: uniq.append(e)
    for e in uniq[:30]: print(f"[waitcheck {name}] {e}")
    return uniq

def finish_kernel(a, vgpr, sgpr, accum=None, verbose=True):
    ins, n = lint(a.lines, a.name, a.autonop, verbose)
    errs = waitcheck(ins, a.name)
    if errs: raise RuntimeError(f"waitcheck errors in {a.name}")
    mv = ma = ms = -1
    for i in ins:
        for r in i.src + i.dst:
            if r[0] == 'v': mv = max(mv, r[1])
            if r[0] == 'a': ma = max(ma, r[1])
            if r[0] == 's' and isinstance(r[1], int): ms = max(ms, r[1])
    acc_off = ((mv + 1 + 3)//4)*4
    tot = acc_off + (ma + 1) if ma >= 0 else mv + 1
    nm = a.name
    s = f".text\n.globl {nm}\n.p2align 8\n.type {nm},@function\n{nm}:\n"
    for i in ins:
        s += (i.text if (i.is_label or i.is_dir) else "  " + i.text) + "\n"
    s += f""".section .rodata,"a"
.p2align 6
.amdhsa_kernel {nm}
  .amdhsa_next_free_vgpr {tot}
  .amdhsa_next_free_sgpr {max(ms+1, 16)}
  .amdhsa_accum_offset {max(acc_off,4)}
  .amdhsa_group_segment_fixed_size 0
  .amdhsa_kernarg_size 96
  .amdhsa_user_sgpr_count 2
  .amdhsa_user_sgpr_kernarg_segment_ptr 1
  .amdhsa_system_sgpr_workgroup_id_x 1
  .amdhsa_float_denorm_mode_32 3
.end_amdhsa_kernel
"""
    if verbose: print(f"[kernel {nm}] vgpr={mv+1} agpr={ma+1} total={tot} sgpr={ms+1} insts={sum(1 for i in ins if i.mn)} autonops={n}")
    return s

class Tracker:
    def __init__(self, a):
        self.a = a; self.vm = []; self.lg = []
    def vmem(self, text, tag=None):
        self.a(text); self.vm.append(tag)
    def ds(self, text, tag=None):
        self.a(text); self.lg.append(tag)
    def _n(self, q, tags):
        last = -1
        for i, t in enumerate(q):
            if t in tags: last = i
        return last
    def wait(self, vm=None, lg=None):
        parts = []
        if vm is not None:
            vm = set(vm) if isinstance(vm, (list, tuple, set)) else {vm}
            last = self._n(self.vm, vm)
            if last >= 0:
                n = len(self.vm) - 1 - last
                parts.append(f"vmcnt({min(n,63)})")
                self.vm = self.vm[len(self.vm)-min(n,63):] if n > 0 else []
        if lg is not None:
            lg = set(lg) if isinstance(lg, (list, tuple, set)) else {lg}
            last = self._n(self.lg, lg)
            if last >= 0:
                n = len(self.lg) - 1 - last
                n = min(n, 15)
                parts.append(f"lgkmcnt({n})")
                self.lg = self.lg[len(self.lg)-n:] if n > 0 else []
        if parts: self.a("s_waitcnt " + " ".join(parts))
    def wait_all(self):
        self.a("s_waitcnt vmcnt(0) lgkmcnt(0)"); self.vm = []; self.lg = []

STAMPS = False
NMARK = 10
def stamp_begin(a, kid):
    if not STAMPS: return
    a("s_memrealtime s[96:97]")
    a("s_memtime s[70:71]")
    for i in range(NMARK): a(f"s_mov_b32 s{72+2*i}, 0")
def mark(a, i):
    if not STAMPS: return
    a(f"s_memtime s[{72+2*i}:{73+2*i}]")
def stamp_end(a, kid, sws=8):
    if not STAMPS: return
    from layout import STAMP
    a("s_waitcnt vmcnt(0) lgkmcnt(0)")
    a("s_memrealtime s[98:99]")
    a("s_memtime s[92:93]")
    a("s_waitcnt lgkmcnt(0)")
    a("v_mov_b32 v4, s96"); a("v_mov_b32 v5, s97"); a("v_mov_b32 v6, s98"); a("v_mov_b32 v7, s99")
    for i in range(NMARK):
        a(f"s_sub_u32 s{72+2*i}, s{72+2*i}, s70")
        a(f"v_mov_b32 v{12+i}, s{72+2*i}")
    a("s_sub_u32 s92, s92, s70")
    a(f"v_mov_b32 v{12+NMARK}, s92")
    a(f"v_mov_b32 v{13+NMARK}, 0")
    a("s_lshl_b32 s94, s2, 6")
    a(f"s_add_u32 s94, s94, {STAMP + kid*65536}")
    a("v_mov_b32 v9, s94")
    a("v_cmp_eq_u32 vcc, 0, v0")
    a("s_and_saveexec_b64 s[100:101], vcc")
    a(f"s_cbranch_execz L_stamp_skip_{kid}")
    a(f"global_store_dwordx4 v9, v[4:7], s[{sws}:{sws+1}]")
    a(f"global_store_dwordx4 v9, v[12:15], s[{sws}:{sws+1}] offset:16")
    a(f"global_store_dwordx4 v9, v[16:19], s[{sws}:{sws+1}] offset:32")
    a(f"global_store_dwordx4 v9, v[20:23], s[{sws}:{sws+1}] offset:48")
    a.label(f"L_stamp_skip_{kid}")
    a("s_mov_b64 exec, s[100:101]")
```

```python
from asmlib import *
from layout import *

def round_bf16(a, dst, src, tmp=None):
    a(f"v_cvt_pk_bf16_f32 v{dst}, v{src}, v{src}")
    a(f"v_lshlrev_b32 v{dst}, 16, v{dst}")

def role_mod(a, s_idx, Lend):
    a.comment("---- role: mod GEMV")
    a(f"s_and_b32 s20, s{s_idx}, 7")
    a(f"s_mul_i32 s20, s20, 24")
    a(f"s_lshr_b32 s21, s{s_idx}, 3")
    a(f"s_add_u32 s20, s20, s21")
    a("v_lshrrev_b32 v1, 1, v0")
    a("v_mul_u32_u24 v2, 6144, v1")
    a("v_and_b32 v3, 1, v0")
    a("v_lshl_add_u32 v2, v3, 4, v2")
    a("s_lshl_b32 s21, s20, 5")
    a("v_add_u32 v2, s21, v2")
    for p in range(4):
        if p: a("v_add_u32 v2, 786432, v2")
        a(f"global_load_dwordx4 v[{8+4*p}:{11+4*p}], v2, s[6:7]")
    a("v_lshlrev_b32 v4, 2, v0")
    a("global_load_dword v5, v4, s[4:5]")
    a("s_waitcnt vmcnt(0)")
    a("v_lshlrev_b32 v6, 16, v5")
    a("v_and_b32 v7, 0xffff0000, v5")
    for r in (6, 7):
        a(f"v_mul_f32 v24, 0xbfb8aa3b, v{r}")
        a(f"v_exp_f32 v24, v24")
        a(f"v_add_f32 v24, 1.0, v24")
        a(f"v_rcp_f32 v24, v24")
        a(f"v_mul_f32 v{r}, v{r}, v24")
        round_bf16(a, r, r)
    a("v_lshlrev_b32 v25, 3, v0")
    a("ds_write_b64 v25, v[6:7]")
    a("s_waitcnt lgkmcnt(0)")
    a("s_barrier")
    a("v_lshlrev_b32 v26, 2, v1")
    for p in range(4):
        a(f"ds_read_b32 v{28+p}, v26 offset:{512*p}")
    a("s_waitcnt lgkmcnt(0)")
    for p in range(4):
        for q in range(4):
            w = 8 + 4*p + q
            a(f"v_lshlrev_b32 v40, 16, v{w}")
            a(f"v_and_b32 v41, 0xffff0000, v{w}")
            if p == 0:
                a(f"v_mul_f32 v{32+2*q}, v28, v40")
                a(f"v_mul_f32 v{33+2*q}, v28, v41")
            else:
                a(f"v_fmac_f32 v{32+2*q}, v{28+p}, v40")
                a(f"v_fmac_f32 v{33+2*q}, v{28+p}, v41")
    a("v_lshlrev_b32 v25, 5, v0")
    a("ds_write_b128 v25, v[32:35] offset:2048")
    a("ds_write_b128 v25, v[36:39] offset:2064")
    a("s_waitcnt lgkmcnt(0)")
    a("s_barrier")
    a("v_lshrrev_b32 v1, 4, v0")
    a("v_and_b32 v2, 15, v0")
    a("v_lshlrev_b32 v3, 9, v2")
    a("v_lshrrev_b32 v4, 3, v1")
    a("v_lshl_add_u32 v3, v4, 5, v3")
    a("v_and_b32 v4, 7, v1")
    a("v_lshl_add_u32 v3, v4, 2, v3")
    for q in range(8):
        a(f"ds_read_b32 v{8+q}, v3 offset:{2048 + 64*q}")
    a("s_waitcnt lgkmcnt(0)")
    a("v_add_f32 v8, v8, v9"); a("v_add_f32 v10, v10, v11"); a("v_add_f32 v12, v12, v13"); a("v_add_f32 v14, v14, v15")
    a("v_add_f32 v8, v8, v10"); a("v_add_f32 v12, v12, v14")
    a("v_add_f32 v8, v8, v12")
    for n in (8, 4, 2, 1):
        a(f"v_add_f32_dpp v8, v8, v8 row_ror:{n} row_mask:0xf bank_mask:0xf")
    round_bf16(a, 8, 8)
    a("s_lshr_b32 s21, s20, 5")
    a("s_cmp_eq_u32 s21, 1")
    a("s_cselect_b32 s22, 1, 0")
    a("s_cmp_eq_u32 s21, 4")
    a("s_cselect_b32 s22, 1, s22")
    a("s_cmp_eq_u32 s22, 0")
    L = a.newlabel()
    a(f"s_cbranch_scc1 {L}")
    a("v_add_f32 v8, 1.0, v8")
    round_bf16(a, 8, 8)
    a.label(L)
    a("s_lshl_b32 s21, s20, 6")
    a("v_lshlrev_b32 v1, 2, v1")
    a("v_add_u32 v1, s21, v1")
    a("global_store_dword v1, v8, s[8:9]")
    a("s_lshr_b32 s21, s20, 5")
    a("s_cmp_lg_u32 s21, 1")
    a(f"s_cbranch_scc1 {Lend}")
    a("v_lshrrev_b32 v9, 16, v8")
    a("v_bfe_u32 v10, v0, 4, 1")
    a("v_cmp_eq_u32 vcc, 0, v10")
    a("v_cndmask_b32 v9, v8, v9, vcc")
    a(f"v_add_u32 v1, {G1X - 2048}, v1")
    a("global_store_dword v1, v9, s[8:9]")
    a(f"s_branch {Lend}")

def role_xhat(a, s_idx, Lend):
    a.comment("---- role: xhat")
    a("v_lshrrev_b32 v1, 6, v0")
    a("v_and_b32 v2, 7, v0")
    a("v_bfe_u32 v3, v0, 3, 3")
    a("v_lshl_add_u32 v4, v1, 3, v2")
    a(f"s_lshl_b32 s20, s{s_idx}, 15")
    a("v_lshlrev_b32 v5, 10, v4")
    a("v_lshl_add_u32 v5, v3, 4, v5")
    a("v_add_u32 v5, s20, v5")
    for i in range(8):
        a(f"global_load_dwordx4 v[{8+4*i}:{11+4*i}], v5, s[10:11] offset:{128*i}")
    a("v_lshrrev_b32 v6, 1, v3")
    a("v_lshlrev_b32 v6, 10, v6")
    a("v_and_b32 v7, 1, v3")
    a("v_lshl_add_u32 v6, v7, 9, v6")
    a("v_lshl_add_u32 v6, v4, 4, v6")
    a(f"s_add_u32 s20, s20, {XH_F}")
    a("v_add_u32 v6, s20, v6")
    a("v_mov_b32 v40, 0x3f803f80")
    a("v_mov_b32 v41, 0")
    a("v_mov_b32 v42, 0")
    a("v_mov_b32 v43, 0")
    a("v_mov_b32 v44, 0")
    a("s_waitcnt vmcnt(0)")
    for r in range(32):
        a(f"v_dot2_f32_bf16 v{41 + (r&1)}, v{8+r}, v40, v{41 + (r&1)}")
        a(f"v_dot2_f32_bf16 v{43 + (r&1)}, v{8+r}, v{8+r}, v{43 + (r&1)}")
    a("v_add_f32 v41, v41, v42")
    a("v_add_f32 v43, v43, v44")
    for r in (41, 43):
        a(f"v_add_f32_dpp v{r}, v{r}, v{r} row_ror:8 row_mask:0xf bank_mask:0xf")
    for sw in ("v_permlane16_swap_b32", "v_permlane32_swap_b32"):
        a("v_mov_b32 v42, v41")
        a("v_mov_b32 v44, v43")
        a(f"{sw} v41, v42")
        a(f"{sw} v43, v44")
        a("v_add_f32 v41, v41, v42")
        a("v_add_f32 v43, v43, v44")
    a("v_mul_f32 v41, 0x3b000000, v41")
    a("v_mul_f32 v43, 0x3b000000, v43")
    a("v_fma_f32 v43, -v41, v41, v43")
    a("v_max_f32 v43, 0, v43")
    a("v_add_f32 v43, 0x3727c5ac, v43")
    a("v_rsq_f32 v43, v43")
    a("v_mul_f32 v41, v41, v43")
    for r in range(32):
        a(f"v_lshlrev_b32 v46, 16, v{8+r}")
        a(f"v_and_b32 v47, 0xffff0000, v{8+r}")
        a(f"v_fma_f32 v46, v46, v43, -v41")
        a(f"v_fma_f32 v47, v47, v43, -v41")
        a(f"v_cvt_pk_bf16_f32 v{8+r}, v46, v47")
        if r % 4 == 3:
            i = r // 4
            a(f"global_store_dwordx4 v6, v[{8+4*i}:{11+4*i}], s[8:9]")
            if i < 7: a("v_add_u32 v6, 4096, v6")
    a(f"s_branch {Lend}")

def tr_addr(a, dst, rowstride_log2, perm, t0, t1, t2):
    a(f"v_and_b32 v{t0}, 63, v0")
    a(f"v_bfe_u32 v{t1}, v{t0}, 2, 2")
    a(f"v_lshrrev_b32 v{t2}, 5, v{t0}")
    a(f"v_lshl_add_u32 v{t1}, v{t2}, {2 if perm else 3}, v{t1}")
    a(f"v_lshlrev_b32 v{dst}, {rowstride_log2}, v{t1}")
    a(f"v_bfe_u32 v{t1}, v{t0}, 4, 1")
    a(f"v_lshl_add_u32 v{dst}, v{t1}, 5, v{dst}")
    a(f"v_and_b32 v{t1}, 3, v{t0}")
    a(f"v_lshl_add_u32 v{dst}, v{t1}, 3, v{dst}")

def role_wqkv(a, s_idx, Lend):
    a.comment("---- role: wqkv relayout")
    a("v_lshrrev_b32 v1, 6, v0")
    a("v_readfirstlane_b32 s20, v1")
    a(f"s_lshl_b32 s21, s{s_idx}, 2")
    a("s_add_u32 s21, s21, s20")
    a("s_and_b32 s22, s21, 7")
    a("s_lshr_b32 s23, s21, 3")
    a("v_and_b32 v2, 63, v0")
    a("v_lshrrev_b32 v3, 3, v2")
    a("v_mul_u32_u24 v3, 3072, v3")
    a("v_and_b32 v4, 7, v2")
    a("v_lshl_add_u32 v3, v4, 4, v3")
    a("s_mul_i32 s24, s23, 49152")
    a("s_lshl_b32 s25, s22, 7")
    a("s_add_u32 s24, s24, s25")
    a("v_add_u32 v3, s24, v3")
    a("v_add_u32 v4, 24576, v3")
    a("s_mul_i32 s26, s20, 6144")
    for ty in range(3):
        a(f"s_add_u32 m0, s26, {ty*2048 - ty*1024 + 0}")
        a(f"global_load_lds_dwordx4 v3, s[12:13] offset:{ty*1024}")
        a(f"s_add_u32 m0, s26, {ty*2048 - ty*1024 + 1024}")
        a(f"global_load_lds_dwordx4 v4, s[12:13] offset:{ty*1024}")
    tr_addr(a, 8, 7, False, 5, 6, 7)
    a("v_add_u32 v8, s26, v8")
    a("v_lshlrev_b32 v9, 4, v2")
    a("s_mul_i32 s27, s22, 196608")
    a("s_lshl_b32 s28, s23, 10")
    a("s_add_u32 s27, s27, s28")
    a(f"s_add_u32 s27, s27, {WQKV_F}")
    a("v_add_u32 v9, s27, v9")
    a("s_waitcnt vmcnt(0)")
    for ty in range(3):
        for e in range(2):
            r = 12 + 4*(2*ty + e)
            a(f"ds_read_b64_tr_b16 v[{r}:{r+1}], v8 offset:{ty*2048 + e*64}")
            a(f"ds_read_b64_tr_b16 v[{r+2}:{r+3}], v8 offset:{ty*2048 + e*64 + 4*128}")
    a("s_waitcnt lgkmcnt(0)")
    for ty in range(3):
        for e in range(2):
            r = 12 + 4*(2*ty + e)
            off = (3*e + ty) * 32768
            a(f"v_add_u32 v10, {off}, v9")
            a(f"global_store_dwordx4 v10, v[{r}:{r+3}], s[8:9]")
    a(f"s_branch {Lend}")

def build_k0():
    a = Asm("k0_kernel")
    Lend = "L_k0_end"
    a("s_load_dwordx2 s[4:5], s[0:1], %d" % A_C)
    a("s_load_dwordx2 s[6:7], s[0:1], %d" % A_WMOD)
    a("s_load_dwordx2 s[8:9], s[0:1], %d" % A_WS)
    a("s_load_dwordx2 s[10:11], s[0:1], %d" % A_X)
    a("s_load_dwordx2 s[12:13], s[0:1], %d" % A_WQKV)
    stamp_begin(a, 0)
    a("s_cmp_ge_u32 s2, 320")
    a(f"s_cbranch_scc1 {Lend}")
    a("s_waitcnt lgkmcnt(0)")
    a("s_cmp_lt_u32 s2, 64")
    a("s_cbranch_scc1 L_k0_xhat")
    a("s_cmp_lt_u32 s2, 128")
    a("s_cbranch_scc1 L_k0_wqkv")
    a("s_sub_u32 s3, s2, 128")
    role_mod(a, 3, Lend)
    a.label("L_k0_xhat")
    role_xhat(a, 2, Lend)
    a.label("L_k0_wqkv")
    a("s_sub_u32 s3, s2, 64")
    role_wqkv(a, 3, Lend)
    a.label(Lend)
    stamp_end(a, 0)
    a("s_endpgm")
    return a, dict(name="k0_kernel", grid=320, block=256, lds=24576)
```

```python
from asmlib import *
from layout import *
QSCALE = 0.25*1.4426950408889634
import struct
def f2u(f): return struct.unpack("<I", struct.pack("<f", f))[0]

def ws_srd(a, s0, sws):
    a(f"s_mov_b32 s{s0}, s{sws}")
    a(f"s_and_b32 s{s0+1}, s{sws+1}, 0xffff")
    a(f"s_mov_b32 s{s0+2}, 0x10000000")
    a(f"s_mov_b32 s{s0+3}, 0x20000")

def build_k1():
    a = Asm("k1_kernel"); T = Tracker(a)
    Lend = "L_k1_end"
    a("s_load_dwordx2 s[8:9], s[0:1], %d" % A_WS)
    stamp_begin(a, 1)
    a("s_cmp_ge_u32 s2, 256")
    a(f"s_cbranch_scc1 {Lend}")
    a("s_and_b32 s16, s2, 7")
    a("s_lshr_b32 s17, s2, 3")
    a("s_and_b32 s20, s16, 3"); a("s_lshl_b32 s20, s20, 2"); a("s_and_b32 s18, s17, 3"); a("s_add_u32 s20, s20, s18")
    a("s_lshr_b32 s21, s16, 2"); a("s_lshl_b32 s21, s21, 3"); a("s_lshr_b32 s18, s17, 2"); a("s_add_u32 s21, s21, s18")
    a("v_lshrrev_b32 v1, 6, v0")
    a("v_and_b32 v2, 63, v0")
    a("v_readfirstlane_b32 s22, v1")
    a("v_lshlrev_b32 v3, 4, v2")
    a("s_waitcnt lgkmcnt(0)")
    ws_srd(a, 24, 8)
    a("s_lshl_b32 s28, s20, 2"); a("s_add_u32 s28, s28, s22"); a("s_lshl_b32 s28, s28, 15"); a(f"s_add_u32 s28, s28, {XH_F}")
    a("s_mul_i32 s29, s21, 98304"); a("s_lshl_b32 s18, s22, 10"); a("s_add_u32 s29, s29, s18"); a(f"s_add_u32 s29, s29, {WQKV_F}")
    a("s_mul_i32 s30, s22, 3072")
    GS = 98304
    a("s_lshl_b32 s18, s22, 10")
    a(f"s_add_u32 m0, s18, {GS}")
    a("s_cmp_ge_u32 s22, 2")
    a(f"s_cselect_b32 s19, {G1X - 2048}, {MODV}")
    a("s_add_u32 s19, s19, s18")
    T.vmem("buffer_load_dwordx4 v3, s[24:27], s19 offen lds", 'gs')
    TOK = 128
    for c in range(8):
        for j in range(3):
            a(f"s_add_u32 m0, s30, {c*12288 + j*1024}")
            a(f"s_add_u32 s31, s29, {j*32768 + c*4096}")
            T.vmem("buffer_load_dwordx4 v3, s[24:27], s31 offen lds", ('w', c))
        if c: a("s_add_u32 s28, s28, 4096")
        for q in range(4):
            s = 4*c + q
            T.vmem(f"buffer_load_dwordx4 v[{TOK+4*s}:{TOK+4*s+3}], v3, s[24:27], s28 offen offset:{q*1024}", ('t', s))
    a("v_lshrrev_b32 v4, 5, v2")
    a("v_lshlrev_b32 v4, 5, v4")
    a(f"v_add_u32 v4, {GS}, v4")
    a("v_add_u32 v5, 65536, v3")
    ACC = 64
    for r in range(48): a(f"v_mov_b32 v{ACC+r}, 0")
    WF = [8, 20]
    GB = [32, 48]
    HT = 112
    def rd_w(s):
        b = WF[s & 1]
        for j in range(3):
            off = (s*3 + j)*1024
            if off < 65536: T.ds(f"ds_read_b128 v[{b+4*j}:{b+4*j+3}], v3 offset:{off}", ('W', s))
            else: T.ds(f"ds_read_b128 v[{b+4*j}:{b+4*j+3}], v5 offset:{off-65536}", ('W', s))
    def rd_g(s):
        b = GB[s & 1]
        T.ds(f"ds_read_b128 v[{b}:{b+3}], v4 offset:{2048 + s*64}", ('G', s))
        T.ds(f"ds_read_b128 v[{b+4}:{b+7}], v4 offset:{2048 + s*64 + 16}", ('G', s))
        T.ds(f"ds_read_b128 v[{b+8}:{b+11}], v4 offset:{s*64}", ('G', s))
        T.ds(f"ds_read_b128 v[{b+12}:{b+15}], v4 offset:{s*64 + 16}", ('G', s))
    for c in range(8):
        tags = [('w', c)] + [('t', 4*c+3)]
        if c == 0: tags.append('gs')
        if c == 0: mark(a, 0)
        T.wait(vm=tags)
        a("s_barrier")
        if c in (0, 1, 3, 5, 7): mark(a, {0:1, 1:2, 3:3, 5:4, 7:5}[c])
        if c == 0: rd_g(0)
        rd_w(4*c)
        for q in range(4):
            s = 4*c + q
            if s + 1 < 32: rd_g(s+1)
            if q < 3: rd_w(s+1)
            T.wait(lg=[('G', s), ('W', s)])
            g = GB[s & 1]; x = TOK + 4*s; hf = 120 + 4*(s & 1)
            for r in range(4):
                a(f"v_dot2_f32_bf16 v{HT+2*r}, v{x+r}, v{g+2*r}, v{g+8+2*r}")
                a(f"v_dot2_f32_bf16 v{HT+2*r+1}, v{x+r}, v{g+2*r+1}, v{g+8+2*r+1}")
            for r in range(4):
                a(f"v_cvt_pk_bf16_f32 v{hf+r}, v{HT+2*r}, v{HT+2*r+1}")
            w = WF[s & 1]
            a("s_nop 1")
            a(f"v_mfma_f32_32x32x16_bf16 v[{ACC}:{ACC+15}], v[{w}:{w+3}], v[{hf}:{hf+3}], v[{ACC}:{ACC+15}]")
            a(f"v_mfma_f32_32x32x16_bf16 v[{ACC+16}:{ACC+31}], v[{w+4}:{w+7}], v[{hf}:{hf+3}], v[{ACC+16}:{ACC+31}]")
            a(f"v_mfma_f32_32x32x16_bf16 v[{ACC+32}:{ACC+47}], v[{hf}:{hf+3}], v[{w+8}:{w+11}], v[{ACC+32}:{ACC+47}]")
    mark(a, 6)
    a("s_lshl_b32 s28, s20, 2"); a("s_add_u32 s28, s28, s22")
    a("s_lshl_b32 s29, s21, 17")
    a("s_lshl_b32 s30, s28, 10")
    a("s_add_u32 s29, s29, s30")
    a(f"s_mov_b32 s31, {hex(f2u(QSCALE))}")
    for hsel in range(2):
        b = ACC + 8*hsel
        for r in range(8): a(f"v_mul_f32 v{b+r}, s31, v{b+r}")
        for r in range(4): a(f"v_cvt_pk_bf16_f32 v{8+4*hsel+r}, v{b+2*r}, v{b+2*r+1}")
        a(f"s_add_u32 s18, s29, {Q_F + hsel*65536}")
        a(f"buffer_store_dwordx4 v[{8+4*hsel}:{11+4*hsel}], v3, s[24:27], s18 offen")
    for hsel in range(2):
        b = ACC + 16 + 8*hsel
        for r in range(4): a(f"v_cvt_pk_bf16_f32 v{16+4*hsel+r}, v{b+2*r}, v{b+2*r+1}")
        a(f"s_add_u32 s18, s29, {K_F + hsel*65536}")
        a(f"buffer_store_dwordx4 v[{16+4*hsel}:{19+4*hsel}], v3, s[24:27], s18 offen")
    a("v_and_b32 v6, 15, v2"); a("v_lshlrev_b32 v6, 4, v6")
    a("v_lshrrev_b32 v7, 5, v2"); a("v_lshl_add_u32 v6, v7, 8, v6")
    a("v_bfe_u32 v7, v2, 4, 1"); a("v_lshl_add_u32 v6, v7, 16, v6")
    b = ACC + 32
    for r in range(8): a(f"v_cvt_pk_bf16_f32 v{24+r}, v{b+2*r}, v{b+2*r+1}")
    a(f"s_add_u32 s18, s29, {V_F}")
    a("buffer_store_dwordx4 v[24:27], v6, s[24:27], s18 offen")
    a("buffer_store_dwordx4 v[28:31], v6, s[24:27], s18 offen offset:512")
    mark(a, 7)
    stamp_end(a, 1)
    a.label(Lend)
    a("s_endpgm")
    return a, dict(name="k1_kernel", grid=256, block=256, lds=98304+4096)
```

```python
from asmlib import *
from layout import *
from k1 import ws_srd, f2u

def build_k2(U=4):
    a = Asm("k2_kernel")
    Lend = "L_k2_end"
    a("s_load_dwordx2 s[8:9], s[0:1], %d" % A_WS)
    stamp_begin(a, 2)
    a("s_cmp_ge_u32 s2, 256")
    a(f"s_cbranch_scc1 {Lend}")
    a("s_and_b32 s16, s2, 7"); a("s_lshr_b32 s17, s2, 3")
    a("s_lshl_b32 s20, s16, 2"); a("s_lshr_b32 s18, s17, 3"); a("s_add_u32 s20, s20, s18")
    a("s_and_b32 s21, s17, 7")
    a("v_lshrrev_b32 v1, 6, v0"); a("v_and_b32 v2, 63, v0")
    a("v_readfirstlane_b32 s22, v1")
    a("v_lshlrev_b32 v3, 4, v2")
    a("s_waitcnt lgkmcnt(0)")
    ws_srd(a, 24, 8)
    QF, NM, S0, S1, P, KF, VF, O = 8, 12, 28, 44, 60, 68, 76, 92
    vK, vV = 4, 5
    a("s_lshl_b32 s28, s20, 16")
    a("s_lshl_b32 s29, s21, 3"); a("s_add_u32 s29, s29, s22")
    a("s_lshl_b32 s30, s29, 10"); a("s_add_u32 s30, s30, s28"); a(f"s_add_u32 s31, s30, {Q_F}")
    a(f"buffer_load_dwordx4 v[{QF}:{QF+3}], v3, s[24:27], s31 offen")
    a("s_lshl_b32 s18, s22, 11")
    a("s_add_u32 s19, s28, s18")
    for c in range(4):
        a(f"s_add_u32 m0, s18, {c*16384}")
        a(f"s_add_u32 s23, s19, {K_F + c*16384}")
        a("buffer_load_dwordx4 v3, s[24:27], s23 offen lds")
        a("buffer_load_dwordx4 v3, s[24:27], s23 offen offset:1024 lds")
        a(f"s_add_u32 m0, s18, {65536 + c*16384}")
        a(f"s_add_u32 s23, s19, {V_F + c*16384}")
        a("buffer_load_dwordx4 v3, s[24:27], s23 offen lds")
        a("buffer_load_dwordx4 v3, s[24:27], s23 offen offset:1024 lds")
    a("v_and_b32 v6, 15, v2"); a("v_lshlrev_b32 v6, 4, v6")
    a("v_lshrrev_b32 v7, 5, v2"); a("v_lshl_add_u32 v6, v7, 8, v6")
    a("v_add_u32 v6, 65536, v6")
    a("s_mov_b32 s34, 0x0000ffff"); a("s_mov_b32 s35, 0x0000ffff")
    for r in range(16): a(f"v_mov_b32 v{VF+r}, 0x3f803f80")
    a("s_mov_b32 s36, 1")
    mark(a, 0)
    a("s_waitcnt vmcnt(12)")
    a("s_barrier")
    mark(a, 1)
    a(f"ds_read_b128 v[{KF}:{KF+3}], v3")
    a("s_waitcnt lgkmcnt(0)")
    a(f"v_mfma_f32_32x32x16_bf16 v[{S0}:{S0+15}], v[{KF}:{KF+3}], v[{QF}:{QF+3}], 0")
    a("s_nop 7"); a("s_nop 3")
    def maxtree(dst, base):
        a(f"v_max3_f32 v{dst}, v{base}, v{base+1}, v{base+2}")
        for r in range(3, 15, 2): a(f"v_max3_f32 v{dst}, v{dst}, v{base+r}, v{base+r+1}")
        a(f"v_max_f32 v{dst}, v{dst}, v{base+15}")
    maxtree(P, S0)
    Lsetm = "L_k2_setm"
    a.label(Lsetm)
    a(f"v_mov_b32 v{P+1}, v{P}")
    a("s_nop 1")
    a(f"v_permlane32_swap_b32 v{P}, v{P+1}")
    a(f"v_max_f32 v{P}, v{P}, v{P+1}")
    for r in range(16): a(f"v_sub_f32 v{NM+r}, 0, v{P}")
    for r in range(16): a(f"v_mov_b32 v{O+r}, 0")
    a(f"v_mov_b32 v{vK}, v3"); a(f"v_mov_b32 v{vV}, v6")
    a(f"ds_read_b128 v[{KF}:{KF+3}], v{vK}")
    a(f"ds_read_b128 v[{KF+4}:{KF+7}], v{vK} offset:1024")
    a("s_mov_b64 exec, s[34:35]")
    a(f"ds_read_b128 v[{VF}:{VF+3}], v{vV}")
    a(f"ds_read_b128 v[{VF+4}:{VF+7}], v{vV} offset:512")
    a("s_mov_b64 exec, -1")
    a("s_waitcnt lgkmcnt(3)")
    a(f"v_mfma_f32_32x32x16_bf16 v[{S0}:{S0+15}], v[{KF}:{KF+3}], v[{QF}:{QF+3}], v[{NM}:{NM+15}]")
    mark(a, 2)
    a("s_mov_b32 s37, 0")
    Lloop = "L_k2_loop"; Lnob = "L_k2_nob"
    a(".p2align 6")
    a.label(Lloop)
    a("s_and_b32 s38, s37, 3"); a("s_cmp_eq_u32 s38, 3"); a("s_cselect_b32 s38, s36, 0")
    a("s_cmp_eq_u32 s37, 15"); a("s_cselect_b32 s38, 0, s38")
    a("s_cmp_eq_u32 s38, 0"); a(f"s_cbranch_scc1 {Lnob}")
    a("s_cmp_eq_u32 s37, 3"); a("s_cbranch_scc1 L_k2_w8")
    a("s_cmp_eq_u32 s37, 7"); a("s_cbranch_scc1 L_k2_w4")
    a("s_waitcnt vmcnt(0)"); a("s_branch L_k2_wb")
    a.label("L_k2_w4"); a("s_waitcnt vmcnt(4)"); a("s_branch L_k2_wb")
    a.label("L_k2_w8"); a("s_waitcnt vmcnt(8)")
    a.label("L_k2_wb"); a("s_barrier")
    a.label(Lnob)
    for u in range(U):
        cur = S0 if u % 2 == 0 else S1; nxt = S1 if u % 2 == 0 else S0
        kn = KF + 4*((u+1) & 1); kf2 = KF + 4*(u & 1)
        vcur = VF + 8*(u & 1); vnx = VF + 8*((u+1) & 1)
        a("s_waitcnt lgkmcnt(2)")
        a(f"v_mfma_f32_32x32x16_bf16 v[{nxt}:{nxt+15}], v[{kn}:{kn+3}], v[{QF}:{QF+3}], v[{NM}:{NM+15}]")
        a(f"ds_read_b128 v[{kf2}:{kf2+3}], v{vK} offset:{(u+2)*1024}")
        for i in range(16):
            a(f"v_exp_f32 v{cur+i}, v{cur+i}")
            if i >= 2 and i % 2 == 0:
                j = (i-2)//2
                a(f"v_cvt_pk_bf16_f32 v{P+j}, v{cur+i-2}, v{cur+i-1}")
            if i == 10:
                a("s_waitcnt lgkmcnt(1)")
                a(f"v_mfma_f32_32x32x16_bf16 v[{O}:{O+15}], v[{vcur}:{vcur+3}], v[{P}:{P+3}], v[{O}:{O+15}]")
        a("s_mov_b64 exec, s[34:35]")
        a(f"ds_read_b128 v[{vnx}:{vnx+3}], v{vV} offset:{(u+1)*1024}")
        a("s_mov_b64 exec, -1")
        a(f"v_cvt_pk_bf16_f32 v{P+7}, v{cur+14}, v{cur+15}")
        a("s_mov_b64 exec, s[34:35]")
        a(f"ds_read_b128 v[{vnx+4}:{vnx+7}], v{vV} offset:{(u+1)*1024+512}")
        a("s_mov_b64 exec, -1")
        a(f"v_mfma_f32_32x32x16_bf16 v[{O}:{O+15}], v[{vcur+4}:{vcur+7}], v[{P+4}:{P+7}], v[{O}:{O+15}]")
    a(f"v_add_u32 v{vK}, {U*1024}, v{vK}")
    a(f"v_add_u32 v{vV}, {U*1024}, v{vV}")
    a("s_add_u32 s37, s37, 1")
    a(f"s_cmp_lt_u32 s37, {64//U}")
    a(f"s_cbranch_scc1 {Lloop}")
    a("s_waitcnt lgkmcnt(0)")
    a("s_nop 7"); a("s_nop 3")
    mark(a, 3)
    a(f"v_max3_f32 v{P}, abs(v{O}), abs(v{O+1}), abs(v{O+2})")
    a(f"v_max3_f32 v{P}, v{P}, abs(v{O+3}), abs(v{O+4})")
    a(f"v_max3_f32 v{P}, v{P}, abs(v{O+5}), abs(v{O+6})")
    a(f"v_max3_f32 v{P}, v{P}, abs(v{O+7}), v{O+8}")
    a(f"v_mov_b32 v{P+1}, 0x71800000")
    a(f"v_add_f32 v{P+2}, v{O}, v{O+1}"); a(f"v_add_f32 v{P+3}, v{O+2}, v{O+3}"); a(f"v_add_f32 v{P+4}, v{O+4}, v{O+5}"); a(f"v_add_f32 v{P+5}, v{O+6}, v{O+7}")
    a(f"v_add_f32 v{P+2}, v{P+2}, v{P+3}"); a(f"v_add_f32 v{P+4}, v{P+4}, v{P+5}"); a(f"v_add_f32 v{P+2}, v{P+2}, v{P+4}"); a(f"v_add_f32 v{P+2}, v{P+2}, v{O+8}")
    a(f"v_cmp_nlt_f32 vcc, v{P}, v{P+1}")
    a(f"v_cmp_u_f32 s[40:41], v{P+2}, v{P+2}")
    a("s_nop 3")
    a("s_or_b64 vcc, vcc, s[40:41]")
    a("s_cmp_eq_u32 s36, 0"); a("s_cbranch_scc1 L_k2_fin")
    a("s_cbranch_vccz L_k2_fin")
    a("s_mov_b32 s36, 0")
    a("s_waitcnt vmcnt(0)")
    a(f"v_mov_b32 v{vK}, v3")
    a(f"v_mov_b32 v{P}, 0xff800000")
    a("s_mov_b32 s37, 0")
    a.label("L_k2_mx")
    a(f"ds_read_b128 v[{KF}:{KF+3}], v{vK}")
    a("s_waitcnt lgkmcnt(0)")
    a(f"v_mfma_f32_32x32x16_bf16 v[{S0}:{S0+15}], v[{KF}:{KF+3}], v[{QF}:{QF+3}], 0")
    a(f"v_add_u32 v{vK}, 1024, v{vK}")
    a("s_nop 7"); a("s_nop 3")
    for r in range(0, 16, 2): a(f"v_max3_f32 v{P}, v{P}, v{S0+r}, v{S0+r+1}")
    a("s_add_u32 s37, s37, 1"); a("s_cmp_lt_u32 s37, 64"); a("s_cbranch_scc1 L_k2_mx")
    a(f"s_branch {Lsetm}")
    a.label("L_k2_fin")
    a(f"v_rcp_f32 v{P}, v{O+8}")
    a("s_nop 0")
    for r in range(8): a(f"v_mul_f32 v{O+r}, v{O+r}, v{P}")
    for r in range(4): a(f"v_cvt_pk_bf16_f32 v{P+4+r}, v{O+2*r}, v{O+2*r+1}")
    a("s_lshl_b32 s30, s29, 15"); a("s_lshl_b32 s31, s20, 10"); a("s_add_u32 s30, s30, s31"); a(f"s_add_u32 s30, s30, {O_F}")
    a(f"buffer_store_dwordx4 v[{P+4}:{P+7}], v3, s[24:27], s30 offen")
    stamp_end(a, 2)
    a.label(Lend)
    a("s_endpgm")
    return a, dict(name="k2_kernel", grid=256, block=512, lds=131072+8192)
```

```python
from asmlib import *
from layout import *
from k1 import ws_srd, f2u

def t2_main(a, T, nsteps_max, R, s_tok, s_w, tok_tile_stride, w_tile_stride, cond_last=None):
    ACC = 64; RING = 128
    for r in range(64): a(f"v_mov_b32 v{ACC+r}, 0")
    a(f"s_mov_b32 s60, s{s_tok}"); a(f"s_add_u32 s61, s{s_tok}, {tok_tile_stride}")
    a(f"s_mov_b32 s62, s{s_w}"); a(f"s_add_u32 s63, s{s_w}, {w_tile_stride}")
    def issue(i):
        b = RING + 16*(i % R)
        for q in range(4):
            T.vmem(f"buffer_load_dwordx4 v[{b+4*q}:{b+4*q+3}], v3, s[24:27], s{60+q} offen", ('st', i))
        for q in range(4): a(f"s_add_u32 s{60+q}, s{60+q}, 4096")
    def comp(i):
        b = RING + 16*(i % R)
        T.wait(vm=[('st', i)])
        for wt in range(2):
            for tt in range(2):
                d = ACC + 16*(wt*2+tt)
                a(f"v_mfma_f32_32x32x16_bf16 v[{d}:{d+15}], v[{b+8+4*wt}:{b+11+4*wt}], v[{b+4*tt}:{b+4*tt+3}], v[{d}:{d+15}]")
    n = nsteps_max
    Lskip = a.newlabel("Lskip")
    for i in range(min(R, n)):
        if cond_last is not None and i == n-1: raise RuntimeError
        issue(i)
    for i in range(n):
        last = (i == n-1)
        if last and cond_last is not None:
            a(f"s_cmp_eq_u32 s{cond_last}, 0"); a(f"s_cbranch_scc1 {Lskip}")
            a("s_waitcnt vmcnt(0)"); T.vm = []
            b = RING + 16*(i % R)
            for wt in range(2):
                for tt in range(2):
                    d = ACC + 16*(wt*2+tt)
                    a(f"v_mfma_f32_32x32x16_bf16 v[{d}:{d+15}], v[{b+8+4*wt}:{b+11+4*wt}], v[{b+4*tt}:{b+4*tt+3}], v[{d}:{d+15}]")
            a.label(Lskip)
        else:
            comp(i)
        j = i + R
        if j < n:
            if j == n-1 and cond_last is not None:
                a(f"s_cmp_eq_u32 s{cond_last}, 0")
                for q in range(4):
                    a(f"s_cselect_b32 s59, 4096, 0"); a(f"s_sub_u32 s{60+q}, s{60+q}, s59"); a(f"s_cmp_eq_u32 s{cond_last}, 0")
            issue(j)

def t2_reduce(a, lds0=0):
    a("s_lshl_b32 s58, s22, 12")
    a("v_add_u32 v6, s58, v3")
    a("s_nop 7"); a("s_nop 3")
    for t in range(4):
        for q in range(4):
            a(f"ds_write_b128 v6, v[{64+16*t+4*q}:{64+16*t+4*q+3}] offset:{t*16384 + q*1024}")
    a("s_waitcnt lgkmcnt(0)")
    a("s_barrier")
    a("s_lshl_b32 s58, s22, 14")
    a("v_add_u32 v6, s58, v3")
    for w in range(4):
        for q in range(4):
            a(f"ds_read_b128 v[{64+16*w+4*q}:{64+16*w+4*q+3}], v6 offset:{w*4096 + q*1024}")
    a("s_waitcnt lgkmcnt(8)")
    for r in range(16): a(f"v_add_f32 v{32+r}, v{64+r}, v{80+r}")
    a("s_waitcnt lgkmcnt(0)")
    for r in range(16): a(f"v_add_f32 v{96+r}, v{96+r}, v{112+r}")
    for r in range(16): a(f"v_add_f32 v{32+r}, v{32+r}, v{96+r}")

def mapping_64(a):
    a("s_and_b32 s16, s2, 7"); a("s_lshr_b32 s17, s2, 3")
    a("s_lshr_b32 s20, s16, 1"); a("s_lshl_b32 s20, s20, 3"); a("s_and_b32 s18, s17, 7"); a("s_add_u32 s20, s20, s18")
    a("s_and_b32 s21, s16, 1"); a("s_lshl_b32 s21, s21, 2"); a("s_lshr_b32 s18, s17, 3"); a("s_add_u32 s21, s21, s18")

def load_vec16(a, T, dst, vec_index, tag):
    a(f"s_lshl_b32 s56, s57, 7"); a(f"s_add_u32 s56, s56, {MODV + vec_index*2048}")
    for j in range(4):
        T.vmem(f"buffer_load_dwordx4 v[{dst+4*j}:{dst+4*j+3}], v7, s[24:27], s56 offen offset:{32*j}", tag)

def build_k3():
    a = Asm("k3_kernel"); T = Tracker(a)
    Lend = "L_k3_end"
    a("s_load_dwordx2 s[8:9], s[0:1], %d" % A_WS)
    a("s_load_dwordx2 s[10:11], s[0:1], %d" % A_X)
    stamp_begin(a, 3)
    a("s_cmp_ge_u32 s2, 256"); a(f"s_cbranch_scc1 {Lend}")
    mapping_64(a)
    a("v_lshrrev_b32 v1, 6, v0"); a("v_and_b32 v2, 63, v0"); a("v_readfirstlane_b32 s22, v1"); a("v_lshlrev_b32 v3, 4, v2")
    a("s_waitcnt lgkmcnt(0)")
    ws_srd(a, 24, 8)
    a("s_lshl_b32 s30, s20, 16"); a("s_lshl_b32 s18, s22, 10"); a("s_add_u32 s30, s30, s18"); a(f"s_add_u32 s30, s30, {O_F}")
    a("s_lshl_b32 s31, s21, 16"); a("s_add_u32 s31, s31, s18"); a(f"s_add_u32 s31, s31, {WO_F}")
    t2_main(a, T, 8, 4, 30, 31, 32768, 32768)
    mark(a, 0)
    a("s_and_b32 s55, s22, 1"); a("s_lshl_b32 s54, s20, 1"); a("s_add_u32 s54, s54, s55")
    a("s_lshr_b32 s55, s22, 1"); a("s_lshl_b32 s57, s21, 1"); a("s_add_u32 s57, s57, s55")
    a("v_lshrrev_b32 v7, 5, v2"); a("v_lshlrev_b32 v7, 4, v7")
    load_vec16(a, T, 128, 2, 'ga')
    load_vec16(a, T, 144, 4, 'g2')
    a("v_and_b32 v8, 31, v2"); a("v_lshlrev_b32 v8, 10, v8"); a("v_lshrrev_b32 v9, 5, v2"); a("v_lshl_add_u32 v8, v9, 3, v8")
    a("s_lshl_b32 s53, s54, 15"); a("s_lshl_b32 s52, s57, 6"); a("s_add_u32 s53, s53, s52")
    a("v_add_u32 v8, s53, v8")
    for j in range(4): T.vmem(f"global_load_dwordx2 v[{160+2*j}:{161+2*j}], v8, s[10:11] offset:{16*j}", 'x')
    t2_reduce(a)
    mark(a, 1)
    T.wait(vm=['x'])
    for j in range(4):
        for h in range(2):
            xr = 160 + 2*j + h
            a(f"v_lshlrev_b32 v48, 16, v{xr}"); a(f"v_and_b32 v49, 0xffff0000, v{xr}")
            r = 4*j + 2*h
            a(f"v_fmac_f32 v48, v{128+r}, v{32+r}"); a(f"v_fmac_f32 v49, v{128+r+1}, v{32+r+1}")
            a(f"v_cvt_pk_bf16_f32 v{170+2*j+h}, v48, v49")
    for p in range(8):
        a(f"v_lshlrev_b32 v{32+2*p}, 16, v{170+p}"); a(f"v_and_b32 v{33+2*p}, 0xffff0000, v{170+p}")
    a("v_mov_b32 v50, 0"); a("v_mov_b32 v51, 0")
    for r in range(16):
        a(f"v_add_f32 v50, v50, v{32+r}"); a(f"v_fmac_f32 v51, v{32+r}, v{32+r}")
    for p in range(8):
        a(f"v_mul_f32 v{32+2*p}, v{32+2*p}, v{144+2*p}"); a(f"v_mul_f32 v{33+2*p}, v{33+2*p}, v{145+2*p}")
        a(f"v_cvt_pk_bf16_f32 v{180+p}, v{32+2*p}, v{33+2*p}")
    a("s_lshl_b32 s53, s54, 15"); a("s_lshl_b32 s52, s57, 11"); a("s_add_u32 s53, s53, s52")
    a(f"s_add_u32 s52, s53, {X1_F}")
    a("buffer_store_dwordx4 v[170:173], v3, s[24:27], s52 offen"); a("buffer_store_dwordx4 v[174:177], v3, s[24:27], s52 offen offset:1024")
    a(f"s_add_u32 s52, s53, {X1G_F}")
    a("buffer_store_dwordx4 v[180:183], v3, s[24:27], s52 offen"); a("buffer_store_dwordx4 v[184:187], v3, s[24:27], s52 offen offset:1024")
    a("v_mov_b32 v52, v50"); a("v_mov_b32 v53, v51"); a("s_nop 1")
    a("v_permlane32_swap_b32 v50, v52"); a("v_permlane32_swap_b32 v51, v53")
    a("v_add_f32 v50, v50, v52"); a("v_add_f32 v51, v51, v53")
    a("v_cmp_gt_u32 vcc, 32, v2"); a("v_cndmask_b32 v50, v51, v50, vcc")
    a("v_and_b32 v8, 31, v2"); a("v_lshlrev_b32 v8, 6, v8"); a("v_lshrrev_b32 v9, 5, v2"); a("v_lshl_add_u32 v8, v9, 11, v8")
    a("s_lshl_b32 s53, s54, 12"); a("s_lshl_b32 s52, s57, 2"); a("s_add_u32 s53, s53, s52"); a(f"s_add_u32 s53, s53, {PS}")
    a("buffer_store_dword v50, v8, s[24:27], s53 offen")
    stamp_end(a, 3)
    a.label(Lend)
    a("s_endpgm")
    return a, dict(name="k3_kernel", grid=256, block=256, lds=65536)

def build_k5():
    a = Asm("k5_kernel"); T = Tracker(a)
    Lend = "L_k5_end"
    a("s_load_dwordx2 s[8:9], s[0:1], %d" % A_WS)
    a("s_load_dwordx2 s[10:11], s[0:1], %d" % A_OUT)
    stamp_begin(a, 6)
    a("s_cmp_ge_u32 s2, 256"); a(f"s_cbranch_scc1 {Lend}")
    mapping_64(a)
    a("v_lshrrev_b32 v1, 6, v0"); a("v_and_b32 v2, 63, v0"); a("v_readfirstlane_b32 s22, v1"); a("v_lshlrev_b32 v3, 4, v2")
    a("s_waitcnt lgkmcnt(0)")
    ws_srd(a, 24, 8)
    TS = 86*1024
    a(f"s_mul_i32 s30, s20, {2*TS}"); a("s_lshl_b32 s18, s22, 10"); a("s_add_u32 s30, s30, s18"); a(f"s_add_u32 s30, s30, {HH_F}")
    a(f"s_mul_i32 s31, s21, {2*TS}"); a("s_add_u32 s31, s31, s18"); a(f"s_add_u32 s31, s31, {W2_F}")
    a("s_cmp_lt_u32 s22, 2"); a("s_cselect_b32 s32, 1, 0")
    t2_main(a, T, 22, 6, 30, 31, TS, TS, cond_last=32)
    mark(a, 0)
    a("s_and_b32 s55, s22, 1"); a("s_lshl_b32 s54, s20, 1"); a("s_add_u32 s54, s54, s55")
    a("s_lshr_b32 s55, s22, 1"); a("s_lshl_b32 s57, s21, 1"); a("s_add_u32 s57, s57, s55")
    a("v_lshrrev_b32 v7, 5, v2"); a("v_lshlrev_b32 v7, 4, v7")
    a("s_waitcnt vmcnt(0)"); T.vm = []
    load_vec16(a, T, 128, 5, 'gb')
    a("s_lshl_b32 s53, s54, 15"); a("s_lshl_b32 s52, s57, 11"); a("s_add_u32 s53, s53, s52"); a(f"s_add_u32 s52, s53, {X1_F}")
    T.vmem("buffer_load_dwordx4 v[160:163], v3, s[24:27], s52 offen", 'x'); T.vmem("buffer_load_dwordx4 v[164:167], v3, s[24:27], s52 offen offset:1024", 'x')
    t2_reduce(a)
    mark(a, 1)
    T.wait(vm=['x'])
    for p in range(8):
        a(f"v_lshlrev_b32 v48, 16, v{160+p}"); a(f"v_and_b32 v49, 0xffff0000, v{160+p}")
        a(f"v_fmac_f32 v48, v{128+2*p}, v{32+2*p}"); a(f"v_fmac_f32 v49, v{129+2*p}, v{33+2*p}")
        a(f"v_cvt_pk_bf16_f32 v{170+p}, v48, v49")
    a("s_nop 1")
    a("v_permlane32_swap_b32 v170, v172"); a("v_permlane32_swap_b32 v171, v173")
    a("v_permlane32_swap_b32 v174, v176"); a("v_permlane32_swap_b32 v175, v177")
    a("v_and_b32 v8, 31, v2"); a("v_lshlrev_b32 v8, 10, v8"); a("v_lshrrev_b32 v9, 5, v2"); a("v_lshl_add_u32 v8, v9, 4, v8")
    a("s_lshl_b32 s53, s54, 15"); a("s_lshl_b32 s52, s57, 6"); a("s_add_u32 s53, s53, s52")
    a("v_add_u32 v8, s53, v8")
    a("global_store_dwordx4 v8, v[170:173], s[10:11]")
    a("global_store_dwordx4 v8, v[174:177], s[10:11] offset:32")
    stamp_end(a, 6)
    a.label(Lend)
    a("s_endpgm")
    return a, dict(name="k5_kernel", grid=256, block=256, lds=65536)
```

```python
from asmlib import *
from layout import *
from k1 import ws_srd, f2u

def build_k4(LOOK=6):
    a = Asm("k4_kernel"); T = Tracker(a)
    Lend = "L_k4_end"
    a("s_load_dwordx2 s[8:9], s[0:1], %d" % A_WS)
    stamp_begin(a, 4)
    a("s_cmp_ge_u32 s2, 256"); a(f"s_cbranch_scc1 {Lend}")
    a("s_and_b32 s16, s2, 7"); a("s_lshr_b32 s17, s2, 3")
    a("s_and_b32 s20, s16, 1"); a("s_lshl_b32 s20, s20, 2"); a("s_and_b32 s18, s17, 3"); a("s_add_u32 s20, s20, s18")
    a("s_lshr_b32 s21, s16, 1"); a("s_lshl_b32 s21, s21, 3"); a("s_lshr_b32 s18, s17, 2"); a("s_add_u32 s21, s21, s18")
    a("s_mul_i32 s33, s21, 3"); a("s_lshl_b32 s34, s21, 1"); a("s_add_u32 s34, s34, 22")
    a("s_cmp_lt_u32 s21, 22"); a("s_cselect_b32 s33, s33, s34"); a("s_cselect_b32 s35, 1, 0")
    a("v_lshrrev_b32 v1, 6, v0"); a("v_and_b32 v2, 63, v0"); a("v_readfirstlane_b32 s22, v1"); a("v_lshlrev_b32 v3, 4, v2")
    a("s_waitcnt lgkmcnt(0)")
    ws_srd(a, 24, 8)
    a("s_lshl_b32 s28, s20, 3"); a("s_add_u32 s28, s28, s22")
    a("s_lshl_b32 s30, s28, 15"); a(f"s_add_u32 s30, s30, {X1G_F}")
    a("s_lshl_b32 s31, s33, 15"); a("s_lshl_b32 s18, s22, 10"); a("s_add_u32 s31, s31, s18"); a(f"s_add_u32 s31, s31, {W13_F}")
    a("s_mul_i32 s32, s22, 3072")
    TOK = 128; ACC = 64
    CS_LDS = 98304
    def issue_w(c):
        for j in range(3):
            a(f"s_add_u32 m0, s32, {c*24576 + j*1024}")
            a(f"s_add_u32 s36, s31, {j*32768 + c*8192}")
            T.vmem("buffer_load_dwordx4 v3, s[24:27], s36 offen lds", ('w', c))
    def issue_t(s):
        if s % 4 == 0 and s > 0: a("s_add_u32 s30, s30, 4096")
        T.vmem(f"buffer_load_dwordx4 v[{TOK+4*s}:{TOK+4*s+3}], v3, s[24:27], s30 offen offset:{(s%4)*1024}", ('t', s))
    issue_w(0)
    for s in range(LOOK): issue_t(s)
    a(f"s_mov_b32 m0, {CS_LDS}")
    a("s_lshl_b32 s36, s33, 8"); a(f"s_add_u32 s36, s36, {CSB}")
    T.vmem("buffer_load_dwordx4 v3, s[24:27], s36 offen lds", 'cs')
    a("v_and_b32 v8, 31, v2"); a("v_lshlrev_b32 v8, 6, v8"); a("v_lshrrev_b32 v9, 5, v2"); a("v_lshl_add_u32 v8, v9, 11, v8")
    a("s_lshl_b32 s37, s28, 12"); a(f"s_add_u32 s37, s37, {PS}")
    for k in range(4): T.vmem(f"buffer_load_dwordx4 v[{32+4*k}:{35+4*k}], v8, s[24:27], s37 offen offset:{16*k}", 'ps')
    a("v_add_u32 v5, 65536, v3")
    for r in range(48): a(f"v_mov_b32 v{ACC+r}, 0")
    WF = [8, 20]
    def rd_w(s):
        b = WF[s & 1]
        for j in range(3):
            off = (s*3 + j)*1024
            if off < 65536: T.ds(f"ds_read_b128 v[{b+4*j}:{b+4*j+3}], v3 offset:{off}", ('W', s))
            else: T.ds(f"ds_read_b128 v[{b+4*j}:{b+4*j+3}], v5 offset:{off-65536}", ('W', s))
    mark(a, 0)
    T.wait(vm=[('w', 0)]); a("s_barrier")
    mark(a, 1)
    rd_w(0)
    for s in range(32):
        c = s // 8
        if s % 8 == 0 and c + 1 < 4: issue_w(c+1)
        if s + LOOK < 32: issue_t(s + LOOK)
        if s + 1 < 32:
            if (s+1) % 8 == 0:
                T.wait(vm=[('w', c+1)]); a("s_barrier")
            rd_w(s+1)
        T.wait(vm=[('t', s)], lg=[('W', s)])
        w = WF[s & 1]; t = TOK + 4*s
        for j in range(3):
            a(f"v_mfma_f32_32x32x16_bf16 v[{ACC+16*j}:{ACC+16*j+15}], v[{w+4*j}:{w+4*j+3}], v[{t}:{t+3}], v[{ACC+16*j}:{ACC+16*j+15}]")
    mark(a, 2)
    T.wait(vm=['ps', 'cs'])
    a("s_barrier")
    for k in range(1, 16): a(f"v_add_f32 v32, v32, v{32+k}")
    a("v_mov_b32 v33, v32"); a("s_nop 1"); a("v_permlane32_swap_b32 v32, v33")
    a("v_mul_f32 v32, 0x3b000000, v32"); a("v_mul_f32 v33, 0x3b000000, v33")
    a("v_fma_f32 v33, -v32, v32, v33"); a("v_max_f32 v33, 0, v33"); a("v_add_f32 v33, 0x3727c5ac, v33"); a("v_rsq_f32 v33, v33")
    a("v_lshrrev_b32 v9, 5, v2"); a("v_lshlrev_b32 v9, 7, v9"); a(f"v_add_u32 v9, {CS_LDS}, v9")
    a(f"s_mul_i32 s37, s28, {86*1024}"); a("s_lshl_b32 s36, s33, 10"); a("s_add_u32 s37, s37, s36"); a(f"s_add_u32 s37, s37, {HH_F}")
    for j in range(3):
        if j == 2:
            a("s_cmp_eq_u32 s35, 0"); a("s_cbranch_scc1 L_k4_done")
        V = 128
        for k in range(8): T.ds(f"ds_read_b128 v[{V+4*k}:{V+4*k+3}], v9 offset:{j*256 + 16*k}", 'v')
        T.wait(lg=['v'])
        A = ACC + 16*j
        for r in range(8):
            a(f"v_fma_f32 v{A+r}, -v32, v{V+r}, v{A+r}")
            a(f"v_fma_f32 v{A+8+r}, -v32, v{V+16+r}, v{A+8+r}")
        for r in range(8):
            a(f"v_fma_f32 v{A+r}, v{A+r}, v33, v{V+8+r}")
            a(f"v_fma_f32 v{A+8+r}, v{A+8+r}, v33, v{V+24+r}")
        for r in range(8): a(f"v_mul_f32 v{40+r}, 0xbfb8aa3b, v{A+r}")
        for r in range(8): a(f"v_exp_f32 v{40+r}, v{40+r}")
        for r in range(8): a(f"v_add_f32 v{40+r}, 1.0, v{40+r}")
        for r in range(8): a(f"v_rcp_f32 v{40+r}, v{40+r}")
        for r in range(8): a(f"v_mul_f32 v{A+r}, v{A+r}, v{A+8+r}")
        for r in range(8): a(f"v_mul_f32 v{A+r}, v{A+r}, v{40+r}")
        for r in range(4): a(f"v_cvt_pk_bf16_f32 v{48+4*j+r}, v{A+2*r}, v{A+2*r+1}")
        a(f"buffer_store_dwordx4 v[{48+4*j}:{51+4*j}], v3, s[24:27], s37 offen offset:{j*1024}")
    a.label("L_k4_done")
    stamp_end(a, 4)
    a.label(Lend)
    a("s_endpgm")
    return a, dict(name="k4_kernel", grid=256, block=512, lds=98304+1024)
```

```python
from asmlib import *
from layout import *
from k1 import ws_srd, f2u
from k0 import tr_addr, round_bf16

def relayout_setup(a, s_g, vb, lds_base_sreg):
    L13 = a.newlabel("L13"); Ld = a.newlabel("Ld"); Lw2 = a.newlabel("Lw2"); Lj = a.newlabel("Lj")
    a(f"v_and_b32 v{vb+2}, 63, v0")
    a(f"s_cmp_ge_u32 s{s_g}, 944"); a(f"s_cbranch_scc1 {L13}")
    a(f"s_cmp_ge_u32 s{s_g}, 256"); a(f"s_cbranch_scc1 {Lw2}")
    a(f"s_mov_b32 s40, s{s_g}"); a("s_mov_b32 s44, s10"); a("s_mov_b32 s45, s11")
    a(f"s_mov_b32 s41, 32768"); a(f"s_mov_b32 s42, {WO_F}"); a(f"s_branch {Lj}")
    a.label(Lw2)
    a(f"s_sub_u32 s40, s{s_g}, 256"); a("s_mov_b32 s44, s12"); a("s_mov_b32 s45, s13")
    a(f"s_mov_b32 s41, {86*1024}"); a(f"s_mov_b32 s42, {W2_F}")
    a.label(Lj)
    a("s_mov_b32 s46, s44"); a("s_mov_b32 s47, s45")
    a("s_and_b32 s43, s40, 7"); a("s_lshr_b32 s40, s40, 3")
    a(f"v_lshrrev_b32 v{vb}, 3, v{vb+2}"); a(f"v_lshlrev_b32 v{vb}, 10, v{vb}")
    a(f"v_and_b32 v{vb+3}, 7, v{vb+2}"); a(f"v_lshl_add_u32 v{vb}, v{vb+3}, 4, v{vb}")
    a("s_lshl_b32 s50, s40, 14"); a("s_lshl_b32 s51, s43, 7"); a("s_add_u32 s50, s50, s51")
    a(f"v_add_u32 v{vb}, s50, v{vb}")
    a(f"v_add_u32 v{vb+4}, 8192, v{vb}")
    a("s_lshl_b32 s51, s43, 1"); a("s_mul_i32 s51, s51, s41"); a("s_add_u32 s48, s42, s51"); a("s_lshl_b32 s51, s40, 10"); a("s_add_u32 s48, s48, s51")
    a("s_add_u32 s49, s48, s41")
    tr_addr(a, vb+1, 7, True, vb+2, vb+3, vb+5)
    a("s_mov_b32 s52, 64"); a(f"s_mov_b32 s53, {8*128}")
    a(f"s_branch {Ld}")
    a.label(L13)
    a(f"s_sub_u32 s40, s{s_g}, 944")
    a("s_mul_i32 s43, s40, 24386"); a("s_lshr_b32 s43, s43, 20")
    a("s_mul_i32 s50, s43, 43"); a("s_sub_u32 s40, s40, s50")
    a("s_mov_b32 s44, s14"); a("s_mov_b32 s45, s15"); a("s_mov_b32 s46, s16"); a("s_mov_b32 s47, s17")
    a(f"v_lshrrev_b32 v{vb}, 2, v{vb+2}"); a(f"v_mul_u32_u24 v{vb}, 2752, v{vb}")
    a(f"v_and_b32 v{vb+3}, 3, v{vb+2}"); a(f"v_lshl_add_u32 v{vb}, v{vb+3}, 4, v{vb}")
    a(f"s_mul_i32 s50, s43, {16*2752}"); a("s_lshl_b32 s51, s40, 6"); a("s_add_u32 s50, s50, s51")
    a(f"v_add_u32 v{vb}, s50, v{vb}")
    a(f"v_mov_b32 v{vb+4}, v{vb}")
    a("s_lshl_b32 s51, s40, 16"); a(f"s_add_u32 s48, s51, {W13_F}"); a("s_lshl_b32 s51, s43, 10"); a("s_add_u32 s48, s48, s51")
    a("s_add_u32 s49, s48, 32768")
    a(f"v_bfe_u32 v{vb+3}, v{vb+2}, 2, 2")
    a(f"v_lshrrev_b32 v{vb+5}, 5, v{vb+2}")
    a(f"v_lshl_add_u32 v{vb+3}, v{vb+5}, 2, v{vb+3}")
    a(f"v_lshlrev_b32 v{vb+1}, 6, v{vb+3}")
    a(f"v_bfe_u32 v{vb+3}, v{vb+2}, 4, 1")
    a(f"v_lshl_add_u32 v{vb+1}, v{vb+3}, 10, v{vb+1}")
    a(f"v_and_b32 v{vb+3}, 3, v{vb+2}")
    a(f"v_lshl_add_u32 v{vb+1}, v{vb+3}, 3, v{vb+1}")
    a("s_mov_b32 s52, 32"); a(f"s_mov_b32 s53, {8*64}")
    a.label(Ld)
    a(f"v_add_u32 v{vb+1}, s{lds_base_sreg}, v{vb+1}")

def relayout_issue(a, vb, lds_base_sreg):
    a(f"s_mov_b32 m0, s{lds_base_sreg}")
    a("s_nop 0")
    a(f"global_load_lds_dwordx4 v{vb}, s[44:45]")
    a(f"s_add_u32 m0, s{lds_base_sreg}, 1024")
    a("s_nop 0")
    a(f"global_load_lds_dwordx4 v{vb+4}, s[46:47]")

def relayout_finish(a, vb):
    a(f"v_add_u32 v{vb+3}, s52, v{vb+1}")
    a(f"v_add_u32 v{vb+4}, s53, v{vb+1}")
    a(f"v_add_u32 v{vb+5}, s53, v{vb+3}")
    d = vb + 8
    a(f"ds_read_b64_tr_b16 v[{d}:{d+1}], v{vb+1}")
    a(f"ds_read_b64_tr_b16 v[{d+2}:{d+3}], v{vb+4}")
    a(f"ds_read_b64_tr_b16 v[{d+4}:{d+5}], v{vb+3}")
    a(f"ds_read_b64_tr_b16 v[{d+6}:{d+7}], v{vb+5}")
    a(f"v_lshlrev_b32 v{vb+6}, 4, v{vb+2}")
    a("s_waitcnt lgkmcnt(0)")
    a(f"buffer_store_dwordx4 v[{d}:{d+3}], v{vb+6}, s[24:27], s48 offen")
    a(f"buffer_store_dwordx4 v[{d+4}:{d+7}], v{vb+6}, s[24:27], s49 offen")

def csb_role(a, s_j, lds0):
    a(f"s_cmp_ge_u32 s{s_j}, 86")
    a("s_cselect_b32 s44, s16, s14"); a("s_cselect_b32 s45, s17, s15")
    a("s_cselect_b32 s40, 1, 0")
    a("s_mul_i32 s41, s40, 86"); a(f"s_sub_u32 s41, s{s_j}, s41")
    a("v_lshrrev_b32 v1, 1, v0"); a("v_mul_u32_u24 v2, 2752, v1"); a("v_and_b32 v3, 1, v0"); a("v_lshl_add_u32 v2, v3, 4, v2")
    a("s_lshl_b32 s42, s41, 5"); a("v_add_u32 v2, s42, v2")
    a("global_load_dwordx4 v[8:11], v2, s[44:45]")
    a(f"v_add_u32 v2, {256*2752}, v2")
    a("global_load_dwordx4 v[12:15], v2, s[44:45]")
    a("v_lshlrev_b32 v4, 2, v1")
    a(f"global_load_dword v16, v4, s[8:9] offset:0")
    a.lines.pop()
    a(f"v_add_u32 v5, {MODV + 3*2048}, v4")
    a("global_load_dword v16, v5, s[8:9]")
    a("global_load_dword v17, v5, s[8:9] offset:1024")
    a("global_load_dword v18, v5, s[8:9] offset:2048")
    a("global_load_dword v19, v5, s[8:9] offset:3072")
    a("s_waitcnt vmcnt(0)")
    for p in range(2):
        for q in range(4):
            w = 8 + 4*p + q
            a(f"v_lshlrev_b32 v40, 16, v{w}"); a(f"v_and_b32 v41, 0xffff0000, v{w}")
            op = "v_mul_f32" if p == 0 else "v_fmac_f32"
            a(f"{op} v{20+2*q}, v{18+p}, v40"); a(f"{op} v{21+2*q}, v{18+p}, v41")
            a(f"{op} v{28+2*q}, v{16+p}, v40"); a(f"{op} v{29+2*q}, v{16+p}, v41")
    for n in (2, 4, 8):
        for r in range(20, 36): a(f"v_add_f32_dpp v{r}, v{r}, v{r} row_ror:{n} row_mask:0xf bank_mask:0xf")
    a("v_and_b32 v3, 15, v0"); a("v_cmp_gt_u32 vcc, 2, v3")
    a("v_lshrrev_b32 v4, 4, v0")
    a("v_and_b32 v5, 1, v0")
    a("v_lshlrev_b32 v4, 7, v4"); a("v_lshl_add_u32 v4, v5, 6, v4")
    a(f"v_add_u32 v4, {lds0}, v4")
    a("s_and_saveexec_b64 s[50:51], vcc")
    for k in range(4): a(f"ds_write_b128 v4, v[{20+4*k}:{23+4*k}] offset:{16*k}")
    a("s_mov_b64 exec, s[50:51]")
    a("s_waitcnt lgkmcnt(0)")
    a("s_barrier")
    a("v_lshrrev_b32 v1, 4, v0"); a("v_and_b32 v2, 15, v0")
    a("v_lshlrev_b32 v3, 7, v2"); a("v_lshl_add_u32 v3, v1, 2, v3")
    a(f"v_add_u32 v3, {lds0}, v3")
    a("ds_read_b32 v8, v3"); a("ds_read_b32 v9, v3 offset:2048")
    a("s_waitcnt lgkmcnt(0)")
    a("v_add_f32 v8, v8, v9")
    for n in (8, 4, 2, 1): a(f"v_add_f32_dpp v8, v8, v8 row_ror:{n} row_mask:0xf bank_mask:0xf")
    a("v_and_b32 v2, 7, v1")
    a("v_lshrrev_b32 v3, 4, v1")
    a("v_lshl_add_u32 v2, v3, 3, v2")
    a("v_bfe_u32 v3, v1, 3, 1")
    a("v_bfe_u32 v4, v2, 2, 1"); a("v_lshlrev_b32 v4, 7, v4")
    a("v_lshl_add_u32 v4, v3, 5, v4")
    a("v_lshrrev_b32 v5, 3, v2"); a("v_lshlrev_b32 v5, 2, v5"); a("v_and_b32 v6, 3, v2"); a("v_add_u32 v5, v5, v6")
    a("v_lshl_add_u32 v4, v5, 2, v4")
    a("s_lshl_b32 s42, s41, 8"); a("s_lshl_b32 s43, s40, 6"); a("s_add_u32 s42, s42, s43"); a(f"s_add_u32 s42, s42, {CSB}")
    a("v_add_u32 v4, s42, v4")
    a("global_store_dword v4, v8, s[8:9]")

def build_kp():
    a = Asm("kp_kernel")
    Lend = "L_kp_end"
    a("s_load_dwordx2 s[8:9], s[0:1], %d" % A_WS)
    a("s_load_dwordx2 s[10:11], s[0:1], %d" % A_WO)
    a("s_load_dwordx2 s[12:13], s[0:1], %d" % A_W2)
    a("s_load_dwordx2 s[14:15], s[0:1], %d" % A_W1)
    a("s_load_dwordx2 s[16:17], s[0:1], %d" % A_W3)
    stamp_begin(a, 5)
    a("s_cmp_ge_u32 s2, 256"); a(f"s_cbranch_scc1 {Lend}")
    a("v_lshrrev_b32 v1, 6, v0"); a("v_readfirstlane_b32 s22, v1")
    a("s_waitcnt lgkmcnt(0)")
    ws_srd(a, 24, 8)
    a("s_lshl_b32 s30, s2, 3"); a("s_add_u32 s30, s30, s22")
    a("s_lshl_b32 s31, s22, 11")
    for rnd in range(2):
        Lskip = a.newlabel("Ls")
        if rnd == 1:
            a("s_add_u32 s30, s30, 2048"); a("s_cmp_ge_u32 s30, 2320"); a(f"s_cbranch_scc1 {Lskip}")
        relayout_setup(a, 30, 50, 31)
        relayout_issue(a, 50, 31)
        a("s_waitcnt vmcnt(0)")
        relayout_finish(a, 50)
        a.label(Lskip)
    a("s_cmp_ge_u32 s2, 172"); a("s_cbranch_scc1 L_kp_fin")
    csb_role(a, 2, 16384)
    a.label("L_kp_fin")
    stamp_end(a, 5)
    a.label(Lend)
    a("s_endpgm")
    return a, dict(name="kp_kernel", grid=256, block=512, lds=16384+4096+2048)
```

```python
MODV  = 0x0
G1X   = 0x3000
CSB   = 0x4000
PS    = 0x10000
XH_F  = 0x100000
WQKV_F= 0x300000
Q_F   = 0x500000
K_F   = 0x700000
V_F   = 0x900000
O_F   = 0xB00000
WO_F  = 0xD00000
W13_F = 0xE00000
W2_F  = 0x1100000
X1_F  = 0x1300000
X1G_F = 0x1500000
HH_F  = 0x1700000
STAMP = 0x2000000
S, D, H, DH, F = 2048, 512, 32, 16, 1376
A_X, A_WQKV, A_WO, A_BX, A_W1, A_W3, A_W2, A_C, A_WMOD, A_OUT, A_DBG, A_WS = 0, 8, 16, 24, 32, 40, 48, 56, 64, 72, 80, 88
```

```python
import sys
from asmlib import *
from layout import *
import k0, k1, k2, kp, k35, k4
HDR = open("adaLN_cond__mha_block__glu_gated_swiglu__prompt.s.ref").read().split("; Override launch")[0]
def generate(builders, path, verbose=True):
    ks = [b() for b in builders]
    s = HDR
    for a, m in ks:
        s += f"; @launch kernel={m['name']} grid=({m['grid']},1,1) block=({m['block']},1,1) lds={m['lds']}\n"
    s += '.amdgcn_target "amdgcn-amd-amdhsa--gfx950"\n'
    seen = set()
    for a, m in ks:
        if m['name'] in seen: continue
        seen.add(m['name'])
        s += finish_kernel(a, None, None, verbose=verbose)
    open(path, "w").write(s)
    return [m for a, m in ks]
if __name__ == "__main__":
    import asmlib
    if "stamps" in sys.argv: asmlib.STAMPS = True
    generate([k0.build_k0, kp.build_kp, k1.build_k1, k2.build_k2, k35.build_k3, k4.build_k4, k35.build_k5], "out.s")
```
